```python
import torch

def _softmax(x, axis=-1):
    return torch.softmax(x, dim=axis)

def _gelu(x):
    return torch.nn.functional.gelu(x, approximate='tanh')

def _silu(x):
    return torch.nn.functional.silu(x)

def _sigmoid(x):
    return torch.sigmoid(x)

def _layernorm(x, axis=-1, eps=1e-05):
    m = x.mean(dim=axis, keepdim=True)
    v = x.var(dim=axis, keepdim=True, unbiased=False)
    return (x - m) / torch.sqrt(v + eps)

def _scatter_add(tgt, idx, src, axis=0):
    return tgt.clone().index_add_(axis, idx, src)

def _segment_sum(src, seg, n):
    out = torch.zeros((n,) + src.shape[1:], dtype=src.dtype)
    return out.index_add_(0, seg, src)

def _pad(x, pw):
    flat = tuple((v for pair in reversed(pw) for v in pair))
    return torch.nn.functional.pad(x, flat)
kernel_name = 'adaLN_cond__gqa_block_cached__geglu_ffn__decode'

def setup_inputs():

    _w = lambda a: (lambda t: t.to(torch.bfloat16) if t.is_floating_point() else t)(torch.as_tensor(a))

    def _A_setup():
        B, Sq, D = (1, 1, 512)
        Hq, Hkv, Sk, Dh = (32, 8, 65536, 128)
        assert Hq % Hkv == 0, (Hq, Hkv)
        return {'x': _w((lambda *s: torch.randn(*s, dtype=torch.bfloat16) * 0.05)(B, Sq, D)), 'k_cache': _w((lambda *s: torch.randn(*s, dtype=torch.bfloat16) * 3.2)(B, Hkv, Sk, Dh)), 'v_cache': _w((lambda *s: torch.randn(*s, dtype=torch.bfloat16) * 0.4)(B, Hkv, Sk, Dh)), 'wq': _w((lambda *s: torch.randn(*s, dtype=torch.bfloat16) * 3.2)(D, Hq * Dh) * D ** (-0.5)), 'wo': _w((lambda *s: torch.randn(*s, dtype=torch.bfloat16) * 0.4)(Hq * Dh, D) * (Hq * Dh) ** (-0.5))}
    _A_in = _A_setup()

    def _B_setup():
        B, S, D, F = (1, 1, 512, 1792)
        return {'x': _w((lambda *s: torch.randn(*s, dtype=torch.bfloat16) * 0.05)(B, S, D)), 'w_gate': _w((lambda *s: torch.randn(*s, dtype=torch.bfloat16) * 0.05)(D, F)), 'w_up': _w((lambda *s: torch.randn(*s, dtype=torch.bfloat16) * 0.05)(D, F)), 'w_down': _w((lambda *s: torch.randn(*s, dtype=torch.bfloat16) * 0.05)(F, D))}
    _B_in = _B_setup()
    return {'A_x': _A_in['x'], 'A_k_cache': _A_in['k_cache'], 'A_v_cache': _A_in['v_cache'], 'A_wq': _A_in['wq'], 'A_wo': _A_in['wo'], 'B_x': _B_in['x'], 'B_w_gate': _B_in['w_gate'], 'B_w_up': _B_in['w_up'], 'B_w_down': _B_in['w_down'], 'c': _w((lambda *s: torch.randn(*s, dtype=torch.bfloat16) * 0.2)(1, 512) * 8.0), 'w_mod': _w((lambda *s: torch.randn(*s, dtype=torch.bfloat16) * 0.2)(512, 6 * 512) * 512 ** (-0.5) * 8.0)}

def reference(A_x, A_k_cache, A_v_cache, A_wq, A_wo, B_x, B_w_gate, B_w_up, B_w_down, c, w_mod):

    def _A_ref(x, k_cache, v_cache, wq, wo):
        B, Sq, D = x.shape
        Hq, Dh = (32, 128)
        Hkv = k_cache.shape[1]
        rep = Hq // Hkv
        q = (lambda x, *d: x.permute(*d))((x @ wq).reshape(B, Sq, Hq, Dh), 0, 2, 1, 3)
        k = (lambda x, n, axis: torch.repeat_interleave(x, n, dim=axis))(k_cache, rep, axis=1)
        v = (lambda x, n, axis: torch.repeat_interleave(x, n, dim=axis))(v_cache, rep, axis=1)
        scores = torch.einsum('bhqd,bhkd->bhqk', q, k) * Dh ** (-0.5)
        p = _softmax(scores, axis=-1)
        o = torch.einsum('bhqk,bhkd->bhqd', p, v)
        return (lambda x, *d: x.permute(*d))(o, 0, 2, 1, 3).reshape(B, Sq, Hq * Dh) @ wo

    def _B_ref(x, w_gate, w_up, w_down):
        return _gelu(x @ w_gate) * (x @ w_up) @ w_down
    x = A_x
    mod = (_silu(c) @ w_mod).reshape(c.shape[0], 6, 1, -1)
    sa, ca, ga, sb, cb, gb = (mod[:, 0].clone(), mod[:, 1].clone(), mod[:, 2].clone(), mod[:, 3].clone(), mod[:, 4].clone(), mod[:, 5].clone())
    h = _layernorm(x, axis=-1) * (1 + ca) + sa
    x = x + ga * _A_ref(h, A_k_cache, A_v_cache, A_wq, A_wo)
    h = _layernorm(x, axis=-1) * (1 + cb) + sb
    x = x + gb * _B_ref(h, B_w_gate, B_w_up, B_w_down)
    return x
```

```python
import sys
NAME = 'adaLN_cond__gqa_block_cached__geglu_ffn__decode'
HDR = open('cdna_kernels/%s.s.ref' % NAME).read()

def wrap(body, grid, block, lds, vgpr, sgpr=96):
    src = HDR.replace('; @launch grid=(2,1,1) block=(256,1,1) lds=0', f'; @launch grid=({grid},1,1) block=({block},1,1) lds={lds}')
    k = NAME + '_kernel'
    i0 = src.index(k + ':\n') + len(k) + 2
    i1 = src.index('s_endpgm')
    src = src[:i0] + body + '\n' + src[i1:]
    acc = (vgpr + 3) // 4 * 4
    if acc > 256: acc = 256
    src = src.replace('.amdhsa_next_free_vgpr 256', f'.amdhsa_next_free_vgpr {vgpr}')
    src = src.replace('.amdhsa_accum_offset 256', f'.amdhsa_accum_offset {acc}')
    src = src.replace('.amdhsa_next_free_sgpr 102', f'.amdhsa_next_free_sgpr {sgpr}')
    return src

def gen(NW=8, kpat='linear', flags='', R=3, assign='blocked', NWG=256, lds=0, half=8):
    o = []
    e = o.append
    e(f's_cmp_ge_u32 s2, {NWG}\ns_cbranch_scc1 L_end')
    e('s_memrealtime s[40:41]')
    e('s_load_dwordx4 s[4:7], s[0:1], 8')
    e('s_load_dwordx2 s[20:21], s[0:1], 104')
    e('v_lshrrev_b32 v1, 6, v0\ns_nop 0\nv_readfirstlane_b32 s3, v1')
    e('v_and_b32 v2, 63, v0')
    e('v_lshlrev_b32 v3, 4, v2')
    e('v_add_u32 v4, 4096, v3')
    if kpat == 'linear':
        e('v_mov_b32 v5, v3\nv_mov_b32 v6, v4')
        koffs = [0, 1024, 2048, 3072]
    elif kpat == 'quad':
        e('v_bfe_u32 v5, v2, 2, 2\nv_lshlrev_b32 v5, 8, v5')
        e('v_lshrrev_b32 v7, 4, v2\nv_lshlrev_b32 v7, 6, v7\nv_add_u32 v5, v5, v7')
        e('v_and_b32 v7, 3, v2\nv_lshlrev_b32 v7, 4, v7\nv_add_u32 v5, v5, v7')
        e('v_add_u32 v6, 4096, v5')
        koffs = [0, 1024, 2048, 3072]
    elif kpat == 'mfma':
        e('v_and_b32 v5, 15, v2\nv_lshlrev_b32 v5, 8, v5')
        e('v_lshrrev_b32 v7, 4, v2\nv_lshlrev_b32 v7, 4, v7\nv_add_u32 v5, v5, v7')
        e('v_add_u32 v6, 4096, v5')
        koffs = [0, 64, 128, 192]
    e('s_waitcnt lgkmcnt(0)')
    e('s_mov_b32 s8, s4\ns_mov_b32 s9, s5\ns_mov_b32 s10, 0x8000000\ns_mov_b32 s11, 0x00020000')
    e('s_mov_b32 s12, s6\ns_mov_b32 s13, s7\ns_mov_b32 s14, 0x8000000\ns_mov_b32 s15, 0x00020000')
    nwaves = NWG * NW
    ntile = 16384 // nwaves
    assert ntile * nwaves == 16384
    if assign == 'blocked':
        per = 16384 // NWG
        e(f's_mul_i32 s16, s2, {per * 8192}')
        e('s_lshl_b32 s17, s3, 13\ns_add_u32 s16, s16, s17')
        step = NW * 8192
    elif assign == 'inter':
        wph = NWG // 8
        e('s_lshr_b32 s16, s2, 3\ns_and_b32 s16, s16, 7\ns_lshl_b32 s16, s16, 24')
        e('s_and_b32 s17, s2, 7\ns_lshr_b32 s18, s2, 6\ns_lshl_b32 s18, s18, 3\ns_add_u32 s17, s17, s18')
        e(f's_mul_i32 s17, s17, {NW}\ns_add_u32 s17, s17, s3\ns_lshl_b32 s17, s17, 13\ns_add_u32 s16, s16, s17')
        step = wph * NW * 8192
    elif assign == 'flat':
        e(f's_mul_i32 s17, s2, {NW}\ns_add_u32 s17, s17, s3\ns_lshl_b32 s16, s17, 13')
        step = nwaves * 8192
    base = 8
    def slot_loads(s, isV):
        r = base + s * 32
        for j in range(8):
            if isV:
                vo, off, srd = ('v3' if j < 4 else 'v4'), (j % 4) * 1024, 's[12:15]'
            else:
                vo, off, srd = ('v5' if j < 4 else 'v6'), koffs[j % 4], 's[8:11]'
            e(f'buffer_load_dwordx4 v[{r+4*j}:{r+4*j+3}], {vo}, {srd}, s16 offen offset:{off} {flags}')
    assert R % 2 == 0
    T = R // 2
    assert ntile % T == 0 and ntile >= T
    for t in range(T):
        slot_loads(2 * t, False)
        slot_loads(2 * t + 1, True)
        e(f's_add_u32 s16, s16, {step}')
    e(f's_mov_b32 s19, {ntile // T - 1}')
    e('v_mov_b32 v7, 0')
    e('s_cmp_eq_u32 s19, 0\ns_cbranch_scc1 L_tail')
    e('L_loop:')
    for t in range(T):
        for isV in (False, True):
            s = 2 * t + (1 if isV else 0)
            e(f's_waitcnt vmcnt({8 * (R - 1)})')
            r = base + s * 32
            for j in range(8):
                e(f'v_xor_b32 v7, v7, v{r + 4 * j}')
            slot_loads(s, isV)
        e(f's_add_u32 s16, s16, {step}')
    e('s_sub_u32 s19, s19, 1\ns_cmp_lg_u32 s19, 0\ns_cbranch_scc1 L_loop')
    e('L_tail:')
    e('s_waitcnt vmcnt(0)')
    for s in range(R):
        e(f'v_xor_b32 v7, v7, v{base + s * 32}')
    e('s_barrier')
    e('s_memrealtime s[42:43]')
    e('s_cmp_lg_u32 s3, 0\ns_cbranch_scc1 L_end')
    e('s_add_u32 s24, s20, 0x10000000\ns_addc_u32 s25, s21, 0\ns_mov_b32 s26, 0x100000\ns_mov_b32 s27, 0x00020000')
    e('s_waitcnt lgkmcnt(0)')
    e('v_mov_b32 v8, s40\nv_mov_b32 v9, s41\nv_mov_b32 v10, s42\nv_mov_b32 v11, s43')
    e('s_lshl_b32 s28, s2, 6\nv_mov_b32 v12, s28')
    e('s_mov_b64 exec, 1')
    e('buffer_store_dwordx4 v[8:11], v12, s[24:27], 0 offen')
    e('buffer_store_dword v7, v12, s[24:27], 0 offen offset:56')
    e('s_waitcnt vmcnt(0)')
    e('L_end:')
    vg = base + R * 32
    return wrap('\n'.join(o), NWG, NW * 64, lds, vg)

if __name__ == '__main__':
    cfgs = {
      'a_lin_r4':   dict(NW=8, kpat='linear', flags='', R=4, assign='blocked', lds=90000),
      'b_lin_r4_nt': dict(NW=8, kpat='linear', flags='nt', R=4, assign='blocked', lds=90000),
      'c_quad_r4_nt': dict(NW=8, kpat='quad', flags='nt', R=4, assign='blocked', lds=90000),
      'd_mfma_r4_nt': dict(NW=8, kpat='mfma', flags='nt', R=4, assign='blocked', lds=90000),
      'e_lin_r4_nt_inter': dict(NW=8, kpat='linear', flags='nt', R=4, assign='inter', lds=90000),
      'f_lin_r4_nt_flat': dict(NW=8, kpat='linear', flags='nt', R=4, assign='flat', lds=90000),
      'g_lin_r2_nt': dict(NW=8, kpat='linear', flags='nt', R=2, assign='blocked', lds=90000),
      'h_lin_r2_nt_w4': dict(NW=4, kpat='linear', flags='nt', R=2, assign='blocked', lds=90000),
      'i_lin_r2_nt_w16': dict(NW=16, kpat='linear', flags='nt', R=2, assign='blocked', lds=90000),
      'j_mfma_r4': dict(NW=8, kpat='mfma', flags='', R=4, assign='blocked', lds=90000),
    }
    for n, c in cfgs.items():
        open(f'st_{n}.s', 'w').write(gen(**c))
    print(' '.join(f'st_{n}.s' for n in cfgs))
```

```python
import sys
from gen_stream import wrap
def gen(NW=4, D=8, flags='nt', NWG=256, lds=90000, kpat='linear'):
    o = []
    e = o.append
    e(f's_cmp_ge_u32 s2, {NWG}\ns_cbranch_scc1 L_end')
    e('s_memrealtime s[40:41]')
    e('s_load_dwordx4 s[4:7], s[0:1], 8')
    e('s_load_dwordx2 s[20:21], s[0:1], 104')
    e('v_lshrrev_b32 v1, 6, v0\ns_nop 0\nv_readfirstlane_b32 s3, v1')
    e('v_and_b32 v2, 63, v0')
    e('v_lshlrev_b32 v3, 4, v2')
    e('v_add_u32 v4, 4096, v3')
    if kpat == 'linear':
        e('v_mov_b32 v5, v3\nv_mov_b32 v6, v4')
        koffs = [0, 1024, 2048, 3072]
    elif kpat == 'mfma':
        e('v_and_b32 v5, 15, v2\nv_lshlrev_b32 v5, 8, v5')
        e('v_lshrrev_b32 v7, 4, v2\nv_lshlrev_b32 v7, 4, v7\nv_add_u32 v5, v5, v7')
        e('v_add_u32 v6, 4096, v5')
        koffs = [0, 64, 128, 192]
    e('s_waitcnt lgkmcnt(0)')
    e('s_mov_b32 s8, s4\ns_mov_b32 s9, s5\ns_mov_b32 s10, 0x8000000\ns_mov_b32 s11, 0x00020000')
    e('s_mov_b32 s12, s6\ns_mov_b32 s13, s7\ns_mov_b32 s14, 0x8000000\ns_mov_b32 s15, 0x00020000')
    nwaves = NWG * NW
    ntile = 16384 // nwaves
    wph = NWG // 8
    e('s_lshr_b32 s16, s2, 3\ns_and_b32 s16, s16, 7\ns_lshl_b32 s16, s16, 24')
    e('s_and_b32 s17, s2, 7\ns_lshr_b32 s18, s2, 6\ns_lshl_b32 s18, s18, 3\ns_add_u32 s17, s17, s18')
    e(f's_mul_i32 s17, s17, {NW}\ns_add_u32 s17, s17, s3\ns_lshl_b32 s17, s17, 13\ns_add_u32 s16, s16, s17')
    step = wph * NW * 8192
    base = 8
    e(f's_mov_b32 s19, {ntile // 2}')
    e('v_mov_b32 v7, 0')
    e('L_loop:')
    for t in range(2):
        for j in range(16):
            isV = j >= 8
            jj = j % 8
            r = base + (t * 16 + j) * 4
            if isV:
                vo, off, srd = ('v3' if jj < 4 else 'v4'), (jj % 4) * 1024, 's[12:15]'
            else:
                vo, off, srd = ('v5' if jj < 4 else 'v6'), koffs[jj % 4], 's[8:11]'
            e(f's_waitcnt vmcnt({D-1})')
            e(f'buffer_load_dwordx4 v[{r}:{r+3}], {vo}, {srd}, s16 offen offset:{off} {flags}')
        e(f's_add_u32 s16, s16, {step}')
    e('s_sub_u32 s19, s19, 1\ns_cmp_lg_u32 s19, 0\ns_cbranch_scc1 L_loop')
    e('s_waitcnt vmcnt(0)')
    e('s_barrier')
    e('s_memrealtime s[42:43]')
    e('s_cmp_lg_u32 s3, 0\ns_cbranch_scc1 L_end')
    e('s_add_u32 s24, s20, 0x10000000\ns_addc_u32 s25, s21, 0\ns_mov_b32 s26, 0x100000\ns_mov_b32 s27, 0x00020000')
    e('s_waitcnt lgkmcnt(0)')
    e('v_mov_b32 v8, s40\nv_mov_b32 v9, s41\nv_mov_b32 v10, s42\nv_mov_b32 v11, s43')
    e('s_lshl_b32 s28, s2, 6\nv_mov_b32 v12, s28')
    e('s_mov_b64 exec, 1')
    e('buffer_store_dwordx4 v[8:11], v12, s[24:27], 0 offen')
    e('s_waitcnt vmcnt(0)')
    e('L_end:')
    vg = base + 128
    return wrap('\n'.join(o), NWG, NW * 64, lds, vg)

if __name__ == '__main__':
    names = []
    for NW, D in [(4,4),(4,6),(4,8),(4,10),(4,12),(4,16),(4,24),(4,32),(8,4),(8,8)]:
        n = f'sd_w{NW}_d{D}.s'
        open(n, 'w').write(gen(NW=NW, D=D))
        names.append(n)
    print(' '.join(names))
    print(', '.join('"scratch/%s"' % n for n in names))
```
